```python
import torch

def _softmax(x, axis=-1):
    return torch.softmax(x, dim=axis)

def _gelu(x):
    return torch.nn.functional.gelu(x, approximate='tanh')

def _silu(x):
    return torch.nn.functional.silu(x)

def _sigmoid(x):
    return torch.sigmoid(x)

def _layernorm(x, axis=-1, eps=1e-05):
    m = x.mean(dim=axis, keepdim=True)
    v = x.var(dim=axis, keepdim=True, unbiased=False)
    return (x - m) / torch.sqrt(v + eps)

def _scatter_add(tgt, idx, src, axis=0):
    return tgt.clone().index_add_(axis, idx, src)

def _segment_sum(src, seg, n):
    out = torch.zeros((n,) + src.shape[1:], dtype=src.dtype)
    return out.index_add_(0, seg, src)

def _pad(x, pw):
    flat = tuple((v for pair in reversed(pw) for v in pair))
    return torch.nn.functional.pad(x, flat)
kernel_name = 'parallel_sum__memory_aug_recurrent_mem_tr__moe_arch_mod__prompt'

def setup_inputs():

    _w = lambda a: (lambda t: t.to(torch.bfloat16) if t.is_floating_point() else t)(torch.as_tensor(a))

    def _A_setup():
        B, S, Dm = (1, 2048, 640)
        H, Dh = (32, 128)
        M, seg = (8, 32)
        seg = min(seg, S)
        S = S // seg * seg
        return {'x': _w((lambda *s: torch.randn(*s, dtype=torch.bfloat16) * 0.05)(B, S, Dm)), 'mem0': _w((lambda *s: torch.randn(*s, dtype=torch.bfloat16) * 1.6)(B, M, Dm)), 'Wq': _w((lambda *s: torch.randn(*s, dtype=torch.bfloat16) * 0.8)(Dm, H, Dh) * Dm ** (-0.5)), 'Wk': _w((lambda *s: torch.randn(*s, dtype=torch.bfloat16) * 0.8)(Dm, H, Dh) * Dm ** (-0.5)), 'Wv': _w((lambda *s: torch.randn(*s, dtype=torch.bfloat16) * 1.6)(Dm, H, Dh) * Dm ** (-0.5)), 'Wo': _w((lambda *s: torch.randn(*s, dtype=torch.bfloat16) * 1.6)(H, Dh, Dm) * (H * Dh) ** (-0.5)), 'seg_len': seg}
    _A_in = _A_setup()

    def _B_setup():
        B, S, D, F, C = (1, 2048, 640, 1728, 8)
        return {'x': _w((lambda *s: torch.randn(*s, dtype=torch.bfloat16) * 0.05)(B, S, D)), 'w_r': _w((lambda *s: torch.randn(*s, dtype=torch.bfloat16) * 0.05)(D)), 'w_gate': _w((lambda *s: torch.randn(*s, dtype=torch.bfloat16) * 0.05)(D, F)), 'w_up': _w((lambda *s: torch.randn(*s, dtype=torch.bfloat16) * 0.05)(D, F)), 'w_down': _w((lambda *s: torch.randn(*s, dtype=torch.bfloat16) * 0.05)(F, D))}
    _B_in = _B_setup()
    return {'A_x': _A_in['x'], 'A_mem0': _A_in['mem0'], 'A_Wq': _A_in['Wq'], 'A_Wk': _A_in['Wk'], 'A_Wv': _A_in['Wv'], 'A_Wo': _A_in['Wo'], 'A_seg_len': _A_in['seg_len'], 'B_x': _B_in['x'], 'B_w_r': _B_in['w_r'], 'B_w_gate': _B_in['w_gate'], 'B_w_up': _B_in['w_up'], 'B_w_down': _B_in['w_down']}

def reference(A_x, A_mem0, A_Wq, A_Wk, A_Wv, A_Wo, A_seg_len, B_x, B_w_r, B_w_gate, B_w_up, B_w_down):

    def _A_ref(x, mem0, Wq, Wk, Wv, Wo, seg_len):
        B, S, Dm = x.shape
        H, Dh = (Wq.shape[1], Wq.shape[2])
        M = mem0.shape[1]
        scale = Dh ** (-0.5)
        n_seg = S // seg_len
        L = M + seg_len
        idx = torch.arange(L)
        mask = (idx[:, None] < M) | (idx[:, None] >= idx[None, :])
        mem = mem0
        outs = []
        for s in range(n_seg):
            xs = x[:, s * seg_len:(s + 1) * seg_len, :].clone()
            h = torch.concatenate([mem, xs], axis=1)
            q = torch.einsum('btd,dhe->bhte', h, Wq)
            k = torch.einsum('btd,dhe->bhte', h, Wk)
            v = torch.einsum('btd,dhe->bhte', h, Wv)
            scores = torch.einsum('bhqe,bhke->bhqk', q, k) * scale
            scores = torch.where(mask[None, None], scores, -1000000000.0)
            p = _softmax(scores, axis=-1)
            o = torch.einsum('bhqk,bhke->bhqe', p, v)
            o = torch.einsum('bhte,hed->btd', o, Wo)
            mem = o[:, :M, :].clone()
            outs.append(o[:, M:, :])
        return torch.concatenate(outs, axis=1)

    def _B_ref(x, w_r, w_gate, w_up, w_down):
        B, S, D = x.shape
        C = 8
        r = x @ w_r
        idx = torch.argsort(-r, axis=-1)[:, :C]
        idx_e = (lambda x, n, axis: torch.repeat_interleave(x, n, dim=axis))(idx.reshape(B, C, 1), D, axis=2)
        x_sel = (lambda x, i, axis: torch.take_along_dim(x, i, dim=axis))(x, idx_e, axis=1)
        g = _silu(x_sel @ w_gate)
        u = x_sel @ w_up
        y = g * u @ w_down
        r_sel = _sigmoid((lambda x, i, axis: torch.take_along_dim(x, i, dim=axis))(r, idx, axis=1))
        y = y * r_sel.reshape(B, C, 1)
        b_off = (torch.arange(B) * S).reshape(B, 1)
        flat_idx = (idx + b_off).reshape(B * C)
        zero = (x * 0.0).reshape(B * S, D)
        upd = _scatter_add(zero, flat_idx, y.reshape(B * C, D), axis=0)
        return x + upd.reshape(B, S, D)
    x = A_x
    xn = _layernorm(x, axis=-1)
    return x + _A_ref(xn, A_mem0, A_Wq, A_Wk, A_Wv, A_Wo, A_seg_len) + _B_ref(xn, B_w_r, B_w_gate, B_w_up, B_w_down)
```

```python
import re

_REG_RE = re.compile(r'^(v|a|s)(\d+)$')
_RNG_RE = re.compile(r'^(v|a|s)\[(\d+):(\d+)\]$')


def parse_regs(tok):
    t = tok.strip()
    t = t.replace('-', '').replace('|', '')
    if t.startswith('abs(') and t.endswith(')'):
        t = t[4:-1]
    m = _REG_RE.match(t)
    if m:
        return [(m.group(1), int(m.group(2)))]
    m = _RNG_RE.match(t)
    if m:
        return [(m.group(1), i) for i in range(int(m.group(2)), int(m.group(3)) + 1)]
    if t == 'vcc':
        return [('vcc', 0)]
    if t in ('vcc_lo', 'vcc_hi'):
        return [('vcc', 0)]
    if t == 'exec':
        return [('exec', 0)]
    if t == 'm0':
        return [('m0', 0)]
    return []


TRANS = ('v_exp_f32', 'v_log_f32', 'v_rcp_f32', 'v_rsq_f32', 'v_sqrt_f32', 'v_sin_f32', 'v_cos_f32',
         'v_rcp_iflag_f32')


class Ins:
    __slots__ = ('mn', 'kind', 'w', 'r', 'pos', 'passes', 'srcC', 'srcAB', 'dpp', 'storedata', 'lanesel')


def split_ops(s):
    out = []
    depth = 0
    cur = ''
    for ch in s:
        if ch in '[(':
            depth += 1
        if ch in '])':
            depth -= 1
        if ch == ',' and depth == 0:
            out.append(cur.strip())
            cur = ''
        else:
            cur += ch
    if cur.strip():
        out.append(cur.strip())
    return out


class Asm:
    def __init__(self):
        self.lines = []
        self.hist = []
        self.pos = 0
        self.nlabel = 0

    def raw(self, s):
        self.lines.append(s)

    def comment(self, s):
        self.lines.append('    ; ' + s)

    def newlabel(self, p='L'):
        self.nlabel += 1
        return '%s_%d' % (p, self.nlabel)

    def label(self, name):
        self.flush()
        self.lines.append(name + ':')

    def nop(self, n):
        while n > 0:
            k = min(n, 16)
            self.lines.append('    s_nop %d' % (k - 1))
            self.pos += k
            n -= k

    def flush(self):
        need = 0
        for h in self.hist:
            d = self.pos - h.pos - 1
            if h.kind == 'mfma':
                req = 12 if h.passes == 8 else 8
            elif h.kind == 'valu':
                req = 5
            elif h.kind == 'vmem' and h.storedata:
                req = 2
            elif h.kind == 'salu' and ('m0', 0) in h.w:
                req = 1
            else:
                req = 0
            need = max(need, req - d)
        if need > 0:
            self.nop(need)
        self.hist = []

    def _classify(self, text):
        body = text.split(';')[0].strip()
        parts = body.split(None, 1)
        mn = parts[0]
        rest = parts[1] if len(parts) > 1 else ''
        ops_raw = split_ops(rest)
        ops = []
        mods = []
        for i, o in enumerate(ops_raw):
            toks = o.split()
            if not toks:
                continue
            ops.append(toks[0])
            mods += toks[1:]
        I = Ins()
        I.mn = mn
        I.w = set()
        I.r = set()
        I.passes = 0
        I.srcC = set()
        I.srcAB = set()
        I.dpp = any(m.startswith(('row_', 'quad_perm', 'wave_', 'row_ror', 'row_shr')) for m in mods) or mn.endswith('_dpp')
        I.storedata = False
        I.lanesel = set()
        R = [parse_regs(o) for o in ops]
        if mn.startswith('v_mfma'):
            I.kind = 'mfma'
            I.passes = 8 if '32x32' in mn else 4
            I.w.update(R[0])
            I.srcAB.update(R[1])
            I.srcAB.update(R[2])
            I.srcC.update(R[3])
            I.r.update(R[1] + R[2] + R[3])
        elif mn.startswith('v_'):
            I.kind = 'valu'
            if mn.startswith('v_permlane') and 'swap' in mn:
                I.w.update(R[0] + R[1])
                I.r.update(R[0] + R[1])
            elif mn.startswith('v_cmpx'):
                I.w.update(R[0])
                I.w.add(('exec', 0))
                for x in R[1:]:
                    I.r.update(x)
            elif mn.startswith(('v_add_co', 'v_sub_co', 'v_addc_co', 'v_subb_co', 'v_subrev_co', 'v_div_scale', 'v_mad_u64_u32')):
                I.w.update(R[0] + R[1])
                for x in R[2:]:
                    I.r.update(x)
            else:
                I.w.update(R[0])
                for x in R[1:]:
                    I.r.update(x)
                if mn.startswith(('v_fmac', 'v_mac', 'v_pk_fmac', 'v_dot2c', 'v_writelane')):
                    I.r.update(R[0])
                if mn.startswith(('v_readlane', 'v_writelane')) and len(R) > 2:
                    I.lanesel.update(R[2])
                if mn.startswith('v_div_fmas'):
                    I.r.add(('vcc', 0))
                if I.dpp:
                    I.r.update(R[0])
        elif mn.startswith(('buffer_', 'global_', 'flat_', 'scratch_')):
            I.kind = 'vmem'
            if mn in ('buffer_wbl2', 'buffer_inv'):
                pass
            elif '_load' in mn and 'lds' not in mods:
                I.w.update(R[0])
                for x in R[1:]:
                    I.r.update(x)
                if 'd16' in mn:
                    I.r.update(R[0])
            else:
                for x in R:
                    I.r.update(x)
                if 'atomic' in mn and 'sc0' in mods:
                    I.w.update(R[0])
                if ('x3' in mn or 'x4' in mn) and 'store' in mn:
                    I.storedata = True
                    I.srcAB = set(R[0] if mn.startswith('buffer') else R[1])
                if 'lds' in mods:
                    I.r.add(('m0', 0))
        elif mn.startswith('ds_'):
            I.kind = 'ds'
            if mn.startswith(('ds_read', 'ds_bpermute', 'ds_permute', 'ds_swizzle')) or '_rtn' in mn:
                I.w.update(R[0])
                for x in R[1:]:
                    I.r.update(x)
            else:
                for x in R:
                    I.r.update(x)
        else:
            I.kind = 'salu'
            if mn.startswith(('s_cmp', 's_waitcnt', 's_barrier', 's_nop', 's_branch', 's_cbranch', 's_endpgm', 's_sleep', 's_setprio')):
                for x in R:
                    I.r.update(x)
            else:
                if R:
                    I.w.update(R[0])
                for x in R[1:]:
                    I.r.update(x)
                if 'saveexec' in mn:
                    I.w.add(('exec', 0))
        return I

    def _required(self, h, I):
        req = 0
        isv = lambda s: {x for x in s if x[0] in ('v', 'a')}
        iss = lambda s: {x for x in s if x[0] in ('s', 'vcc')}
        if h.kind == 'valu':
            hw_v = isv(h.w)
            hw_s = iss(h.w)
            if I.kind == 'mfma' and hw_v & I.r:
                req = max(req, 2)
            if h.mn.startswith(TRANS) and I.kind == 'valu' and (hw_v & I.r) and not I.mn.startswith(TRANS):
                req = max(req, 1)
            if h.mn.startswith(TRANS) and I.kind in ('vmem', 'ds') and (hw_v & I.r):
                req = max(req, 1)
            if hw_s:
                if I.kind == 'valu' and hw_s & I.r:
                    req = max(req, 2)
                    if hw_s & I.lanesel:
                        req = max(req, 4)
                    if I.mn.startswith('v_div_fmas'):
                        req = max(req, 4)
                if I.kind == 'vmem' and hw_s & I.r:
                    req = max(req, 5)
                if I.kind == 'salu' and hw_s & I.r:
                    req = max(req, 1)
            if I.kind == 'valu' and I.mn.startswith(('v_readlane', 'v_readfirstlane')) and hw_v & I.r:
                req = max(req, 1)
            if I.kind == 'valu' and (I.mn.startswith('v_permlane') or I.dpp) and hw_v & I.r:
                req = max(req, 2)
            if ('exec', 0) in h.w:
                if I.kind == 'valu' and I.dpp:
                    req = max(req, 5)
                if I.kind == 'valu' and I.mn.startswith(('v_readlane', 'v_readfirstlane', 'v_writelane', 'v_permlane')):
                    req = max(req, 4)
                if I.kind == 'mfma':
                    req = max(req, 4)
                if I.kind == 'valu' and ('exec', 0) in I.r:
                    req = max(req, 2)
        elif h.kind == 'mfma':
            big = h.passes == 8
            D = h.w
            if I.kind == 'mfma':
                if D & I.srcAB:
                    req = max(req, 12 if big else 8)
                if D & I.srcC:
                    if I.srcC == D and I.mn == h.mn:
                        req = max(req, 0)
                    else:
                        req = max(req, 10 if big else 8)
                elif D & I.w:
                    req = max(req, 12 if big else 8)
            elif I.kind in ('valu', 'vmem', 'ds'):
                if D & (I.r | I.w):
                    req = max(req, 12 if big else 8)
            if I.kind == 'valu' and h.srcC & I.w:
                req = max(req, 7 if big else 3)
        elif h.kind == 'vmem':
            if h.storedata and I.kind in ('valu', 'mfma') and h.srcAB & I.w:
                req = max(req, 2)
            if h.storedata and I.kind in ('vmem', 'ds') and h.srcAB & I.w:
                req = max(req, 1)
        elif h.kind == 'salu':
            if ('m0', 0) in h.w and ('m0', 0) in I.r:
                req = max(req, 1)
        return req

    def emit(self, text):
        for line in text.strip().split('\n'):
            line = line.strip()
            if not line or line.startswith(';'):
                if line:
                    self.lines.append('    ' + line)
                continue
            if line.endswith(':'):
                self.label(line[:-1])
                continue
            I = self._classify(line)
            if I.mn.startswith(('s_branch', 's_cbranch', 's_endpgm', 's_setpc', 's_swappc')):
                self.flush()
            need = 0
            for h in self.hist:
                d = self.pos - h.pos - 1
                r = self._required(h, I)
                need = max(need, r - d)
            if need > 0:
                self.nop(need)
            self.lines.append('    ' + line)
            I.pos = self.pos
            if I.mn == 's_nop':
                n = int(line.split()[1], 0)
                self.pos += n + 1
            else:
                self.pos += 1
            self.hist.append(I)
            self.hist = [h for h in self.hist if self.pos - h.pos <= 16]

    def __call__(self, text):
        self.emit(text)

    def text(self):
        return '\n'.join(self.lines) + '\n'


def vr(base, n=1):
    return 'v%d' % base if n == 1 else 'v[%d:%d]' % (base, base + n - 1)


def ar(base, n=1):
    return 'a%d' % base if n == 1 else 'a[%d:%d]' % (base, base + n - 1)


def sr(base, n=1):
    return 's%d' % base if n == 1 else 's[%d:%d]' % (base, base + n - 1)
```

```python
from asmlib import Asm, vr, ar, sr

XN = 0x0000000
RBUF = 0x0300000
MOEI = 0x0308000
HBUF = 0x0310000
YBUF = 0x0320000
MEMB = 0x0400000
MEMS = 16384
OBUF = 0x0600000
OBS = 65536
WOP = 0x1000000
QX = 0x2000000
KX = 0x3000000
VX = 0x4000000
KM = 0x5000000
VM = 0x6000000
WS_BYTES = 268435456

K_X, K_MEM0, K_WQ, K_WK, K_WV, K_WO, K_SEG, K_BX, K_WR, K_WG, K_WU, K_WD, K_OUT, K_DBG, K_WS = [8 * i for i in range(15)]

SENT = 0xFFFFFFFF


def srd(a, dst, ptr, nbytes):
    a(f's_mov_b32 s{dst}, s{ptr}')
    a(f's_and_b32 s{dst+1}, s{ptr+1}, 0xffff')
    a(f's_mov_b32 s{dst+2}, {nbytes}')
    a(f's_mov_b32 s{dst+3}, 0x00020000')


def wave_reduce(a, v, op='v_add_f32'):
    for sh in (1, 2, 4, 8):
        a(f'{op}_dpp v{v}, v{v}, v{v} row_shr:{sh} row_mask:0xf bank_mask:0xf bound_ctrl:0')
    a(f'{op}_dpp v{v}, v{v}, v{v} row_bcast:15 row_mask:0xa bank_mask:0xf')
    a(f'{op}_dpp v{v}, v{v}, v{v} row_bcast:31 row_mask:0xc bank_mask:0xf')


def kernel_desc(name, vgpr, sgpr, accum):
    return f'''.amdhsa_kernel {name}
  .amdhsa_next_free_vgpr {vgpr}
  .amdhsa_next_free_sgpr {sgpr}
  .amdhsa_accum_offset {accum}
  .amdhsa_group_segment_fixed_size 0
  .amdhsa_kernarg_size 120
  .amdhsa_user_sgpr_count 2
  .amdhsa_user_sgpr_kernarg_segment_ptr 1
  .amdhsa_system_sgpr_workgroup_id_x 1
  .amdhsa_float_denorm_mode_32 3
  .amdhsa_float_denorm_mode_16_64 3
.end_amdhsa_kernel
'''


def kernel_head(a, name):
    a.raw(f'.globl {name}')
    a.raw('.p2align 8')
    a.raw(f'.type {name},@function')
    a.raw(f'{name}:')
```

```python
import sys, os, importlib
sys.path.insert(0, os.path.dirname(__file__))
from asmlib import Asm
import common

HEADER = open(os.path.join(os.path.dirname(__file__), '..', 'cdna_kernels',
    'parallel_sum__memory_aug_recurrent_mem_tr__moe_arch_mod__prompt.s.ref')).read().split('; Override')[0]

def build(mods, out):
    a = Asm()
    ms = [importlib.import_module(m) for m in mods]
    txt = HEADER
    for m in ms:
        txt += m.LAUNCH + '\n'
    txt += '.amdgcn_target "amdgcn-amd-amdhsa--gfx950"\n.text\n'
    for m in ms:
        m.gen(a)
    txt += a.text()
    txt += '.section .rodata,"a"\n.p2align 6\n'
    for m in ms:
        txt += '.p2align 6\n' + m.DESC
    open(out, 'w').write(txt)

if __name__ == '__main__':
    mods = sys.argv[2:]
    build(mods, sys.argv[1])
```
